```python
import torch

def _softmax(x, axis=-1):
    return torch.softmax(x, dim=axis)
def _gelu(x):
    return torch.nn.functional.gelu(x, approximate="tanh")
def _silu(x):
    return torch.nn.functional.silu(x)
def _sigmoid(x):
    return torch.sigmoid(x)
def _layernorm(x, axis=-1, eps=1e-5):
    m = x.mean(dim=axis, keepdim=True)
    v = x.var(dim=axis, keepdim=True, unbiased=False)
    return (x - m) / torch.sqrt(v + eps)
def _scatter_add(tgt, idx, src, axis=0):
    return tgt.clone().index_add_(axis, idx, src)
def _segment_sum(src, seg, n):
    out = torch.zeros((n,) + src.shape[1:], dtype=src.dtype)
    return out.index_add_(0, seg, src)
def _pad(x, pw):
    flat = tuple(v for pair in reversed(pw) for v in pair)
    return torch.nn.functional.pad(x, flat)

kernel_name = 'interleave_layers__sliding_block_cached__glu_gated_swiglu__decode'

def setup_inputs():

    _w = (lambda a: (lambda t: t.to(torch.bfloat16) if t.is_floating_point() else t)(torch.as_tensor(a)))
    def _A_setup():
        B, Sq, D = 1, 1, 512
        Hq, Hkv, Sk, Dh = 32, 8, 65536, 128
        assert Hq % Hkv == 0, (Hq, Hkv)
        return {
            "x": _w((lambda *s: torch.randn(*s, dtype=torch.bfloat16) * 0.05)(B, Sq, D)),
            "k_cache": _w((lambda *s: torch.randn(*s, dtype=torch.bfloat16) * 0.8)(B, Hkv, Sk, Dh)),
            "v_cache": _w((lambda *s: torch.randn(*s, dtype=torch.bfloat16) * 0.8)(B, Hkv, Sk, Dh)),
            "wq": _w((lambda *s: torch.randn(*s, dtype=torch.bfloat16) * 0.8)(D, Hq * Dh) * (D ** -0.5)),
            "wo": _w((lambda *s: torch.randn(*s, dtype=torch.bfloat16) * 0.8)(Hq * Dh, D) * ((Hq * Dh) ** -0.5)),
        }
    _A_in = _A_setup()

    def _B_setup():
        B, S, D, F = 1, 1, 512, 1792
        return {
            "x": _w((lambda *s: torch.randn(*s, dtype=torch.bfloat16) * 0.05)(B, S, D)),
            "w1": _w((lambda *s: torch.randn(*s, dtype=torch.bfloat16) * 0.2)(D, F) * (2.0 / D) ** 0.5),
            "w3": _w((lambda *s: torch.randn(*s, dtype=torch.bfloat16) * 0.2)(D, F) * (2.0 / D) ** 0.5),
            "w2": _w((lambda *s: torch.randn(*s, dtype=torch.bfloat16) * 0.2)(F, D) * (2.0 / F) ** 0.5),
        }
    _B_in = _B_setup()

    return {
        "A_x": _A_in["x"],
        "A_k_cache": _A_in["k_cache"],
        "A_v_cache": _A_in["v_cache"],
        "A_wq": _A_in["wq"],
        "A_wo": _A_in["wo"],
        "B_x": _B_in["x"],
        "B_w1": _B_in["w1"],
        "B_w3": _B_in["w3"],
        "B_w2": _B_in["w2"],
    }

def reference(A_x, A_k_cache, A_v_cache, A_wq, A_wo, B_x, B_w1, B_w3, B_w2):
    def _A_ref(x, k_cache, v_cache, wq, wo):
        B, Sq, D = x.shape
        Hq, Dh = 32, 128
        Hkv, Sk = k_cache.shape[1], k_cache.shape[2]
        W = min(4096, max(256, Sk // 4))
        rep = Hq // Hkv
        q = (lambda x, *d: x.permute(*d))((x @ wq).reshape(B, Sq, Hq, Dh), 0, 2, 1, 3)
        k = (lambda x, n, axis: torch.repeat_interleave(x, n, dim=axis))(k_cache[:, :, Sk - W:, :], rep, axis=1)
        v = (lambda x, n, axis: torch.repeat_interleave(x, n, dim=axis))(v_cache[:, :, Sk - W:, :], rep, axis=1)
        scores = torch.einsum("bhqd,bhkd->bhqk", q, k) * (Dh ** -0.5)
        p = _softmax(scores, axis=-1)
        o = torch.einsum("bhqk,bhkd->bhqd", p, v)
        return (lambda x, *d: x.permute(*d))(o, 0, 2, 1, 3).reshape(B, Sq, Hq * Dh) @ wo

    def _B_ref(x, w1, w3, w2):
        gate = torch.einsum("bsd,df->bsf", x, w1)
        up = torch.einsum("bsd,df->bsf", x, w3)
        h = _silu(gate) * up
        out = torch.einsum("bsf,fd->bsd", h, w2)
        return out

    x = A_x
    x = x + _A_ref(_layernorm(x, axis=-1), A_k_cache, A_v_cache, A_wq, A_wo)
    x = x + _B_ref(_layernorm(x, axis=-1), B_w1, B_w3, B_w2)
    x = x + _A_ref(_layernorm(x, axis=-1), A_k_cache, A_v_cache, A_wq, A_wo)
    x = x + _B_ref(_layernorm(x, axis=-1), B_w1, B_w3, B_w2)
    return x
```

```python
import re

TRANS = ("v_exp_f32", "v_log_f32", "v_rcp_f32", "v_rsq_f32", "v_sqrt_f32", "v_sin_f32", "v_cos_f32")


def regs_of(tok):
    tok = tok.strip()
    t = tok.lstrip("-")
    if t.startswith("abs(") or t.startswith("|"):
        t = t.replace("abs(", "").replace(")", "").replace("|", "")
    m = re.fullmatch(r"([vs])(\d+)", t)
    if m:
        return m.group(1), {int(m.group(2))}
    m = re.fullmatch(r"([vs])\[(\d+):(\d+)\]", t)
    if m:
        return m.group(1), set(range(int(m.group(2)), int(m.group(3)) + 1))
    if t in ("vcc", "vcc_lo", "vcc_hi"):
        return "s", {"vcc"}
    if t == "m0":
        return "s", {"m0"}
    if t in ("exec", "exec_lo", "exec_hi"):
        return "s", {"exec"}
    return None, set()


class Ins:
    def __init__(self, text):
        self.text = text
        body = text.split(";")[0].strip()
        parts = body.split(None, 1)
        self.op = parts[0]
        rest = parts[1] if len(parts) > 1 else ""
        ops, depth, cur = [], 0, ""
        for ch in rest:
            if ch in "[(":
                depth += 1
            if ch in "])":
                depth -= 1
            if ch == "," and depth == 0:
                ops.append(cur.strip())
                cur = ""
            else:
                cur += ch
        if cur.strip():
            ops.append(cur.strip())
        self.mods = ""
        if ops:
            last = ops[-1].split(None, 1)
            ops[-1] = last[0]
            self.mods = last[1] if len(last) > 1 else ""
        self.ops = ops
        op = self.op
        self.mfma = op.startswith("v_mfma")
        self.valu = op.startswith("v_") and not self.mfma
        self.trans = any(op.startswith(t) for t in TRANS)
        self.dpp = "_dpp" in op or any(k in self.mods for k in ("row_", "quad_perm"))
        self.perm = op.startswith("v_permlane")
        self.vmem = op.startswith("buffer_") or op.startswith("global_")
        self.ds = op.startswith("ds_")
        self.salu = op.startswith("s_")
        self.sdwa = "_sdwa" in op
        self.lds_dma = self.vmem and (" lds" in " " + self.mods or "load_lds" in op)
        vw, vr, sw, sr = set(), set(), set(), set()

        def rd(tok):
            k, s = regs_of(tok)
            if k == "v":
                vr.update(s)
            elif k == "s":
                sr.update(s)

        def wr(tok):
            k, s = regs_of(tok)
            if k == "v":
                vw.update(s)
            elif k == "s":
                sw.update(s)

        self.srcC = set()
        self.srcAB = set()
        if self.mfma:
            wr(ops[0])
            for t in ops[1:]:
                rd(t)
            self.srcAB = regs_of(ops[1])[1] | regs_of(ops[2])[1]
            k, s = regs_of(ops[3])
            self.srcC = s if k == "v" else set()
        elif self.valu:
            wr(ops[0])
            rest_ops = ops[1:]
            if op.startswith("v_add_co") or op.startswith("v_addc_co") or op.startswith("v_sub_co"):
                wr(ops[1])
                rest_ops = ops[2:]
            for t in rest_ops:
                rd(t)
            if self.perm:
                wr(ops[1])
                rd(ops[0])
            if op.startswith("v_fmac") or op.startswith("v_writelane") or op.startswith("v_dot2c") or (
                self.dpp and ("bank_mask" in self.mods or "row_mask" in self.mods or "row_sh" in self.mods)
            ):
                rd(ops[0])
        elif self.vmem:
            if "store" in op:
                for t in ops:
                    rd(t)
            elif self.lds_dma:
                for t in ops:
                    rd(t)
                sr.add("m0")
            else:
                wr(ops[0])
                for t in ops[1:]:
                    rd(t)
        elif self.ds:
            if op.startswith("ds_write"):
                for t in ops:
                    rd(t)
            else:
                wr(ops[0])
                for t in ops[1:]:
                    rd(t)
        elif self.salu:
            if ops and not op.startswith(("s_cmp", "s_cbranch", "s_branch", "s_waitcnt", "s_nop", "s_bitcmp")):
                wr(ops[0])
                for t in ops[1:]:
                    rd(t)
        self.vw, self.vr, self.sw, self.sr = vw, vr, sw, sr
        self.store_data = set()
        if self.vmem and "store" in op and ("x4" in op or "x3" in op):
            tok = ops[0] if op.startswith("buffer_") else ops[1]
            self.store_data = regs_of(tok)[1]
        self.states = 1
        if op == "s_nop":
            self.states = int(ops[0], 0) + 1


def need(p, c):
    n = 0
    if p.valu:
        if c.dpp and p.vw & c.vr:
            n = max(n, 2)
        if c.perm and p.vw & c.vr:
            n = max(n, 2)
        if c.mfma and p.vw & c.vr:
            n = max(n, 2)
        if c.op.startswith(("v_readlane", "v_readfirstlane")) and p.vw & c.vr:
            n = max(n, 1)
        if p.trans and c.valu and not c.trans and p.vw & c.vr:
            n = max(n, 1)
        if p.trans and (c.ds or c.vmem) and p.vw & c.vr:
            n = max(n, 1)
        if p.sdwa and c.valu and p.vw & (c.vr | c.vw):
            n = max(n, 1)
        if p.sw:
            if c.valu and p.sw & c.sr:
                n = max(n, 4 if c.op.startswith(("v_readlane", "v_writelane")) else 2)
            if c.vmem and p.sw & c.sr:
                n = max(n, 5)
            if c.salu and p.sw & c.sr:
                n = max(n, 1)
    if p.mfma:
        if c.mfma:
            if p.vw & c.srcAB:
                n = max(n, 8)
            if p.vw & c.srcC and p.vw != c.srcC:
                n = max(n, 6)
        elif (c.valu or c.vmem or c.ds) and p.vw & (c.vr | c.vw):
            n = max(n, 8)
        if c.valu and p.srcC & c.vw:
            n = max(n, 3)
    if p.store_data and c.vw & p.store_data:
        n = max(n, 2)
    if p.salu and "m0" in p.sw and c.lds_dma:
        n = max(n, 1)
    return n


class Emit:
    def __init__(self):
        self.lines = []
        self.hist = []
        self.nops = 0

    def raw(self, text):
        self.lines.append(text)

    def label(self, name):
        self.lines.append(name + ":")

    def cmt(self, text):
        self.lines.append("    ; " + text)

    def cut(self):
        self.hist = []

    def __call__(self, text):
        for t in text.strip().split("\n"):
            t = t.strip()
            if t:
                self._one(t)

    def _one(self, text):
        ins = Ins(text)
        dist, pad = 0, 0
        for p in reversed(self.hist):
            pad = max(pad, need(p, ins) - dist)
            dist += p.states
            if dist > 12:
                break
        if pad > 0:
            nop = Ins(f"s_nop {pad - 1}")
            self.lines.append("    " + nop.text)
            self.hist.append(nop)
            self.nops += pad
        self.lines.append("    " + text)
        self.hist.append(ins)
        self.hist = self.hist[-16:]

    def text(self):
        return "\n".join(self.lines) + "\n"
```

```python
import sys, os, math
sys.path.insert(0, os.path.dirname(os.path.abspath(__file__)))
from emit import Emit

NAME = "interleave_layers__sliding_block_cached__glu_gated_swiglu__decode"

WS_EPOCH = 0
WS_A1 = 0x10000
WS_CD = 0x40000
CD_PASS = 0x20000
WS_LR = 0x80000
LR_SIZE = 0x28000
LR_AQ = 0x0
LR_PR = 0x4000
PR_SIZE = 0x12000
PR_B = 0x0
PR_E = 0x8000
PR_ML = 0x10000
PR_ST = 0x10400
WS_DBG = 0x200000
WS_USED = 0x400000
OOB = 0x40000000

L_WQ, L_K, L_V, L_WO, L_W1, L_W3, L_W2 = 0x0, 0x4000, 0xC000, 0x14000, 0x18000, 0x1A000, 0x1C000
L_XS = 0x1E000
L_ONES = L_XS + 128
L_HS = L_XS + 256
L_MM = L_XS + 384
L_FL = L_XS + 448
L_ZZ = L_XS + 480
L_QR = L_XS + 512
L_PP = L_XS + 2048
L_DUM = L_XS + 3072
LDS_BYTES = L_XS + 4096

SPIN = 40000


class Regs:
    def __init__(self, first, last):
        self.n, self.last, self.names = first, last, {}

    def __call__(self, name, cnt=1, align=None):
        align = align or (1 if cnt == 1 else 2 if cnt == 2 else 4)
        self.n = -(-self.n // align) * align
        r = self.n
        self.n += cnt
        assert self.n - 1 <= self.last, name
        self.names[name] = r
        return r


def v(r, n=1):
    return f"v{r}" if n == 1 else f"v[{r}:{r + n - 1}]"


def s(r, n=1):
    return f"s{r}" if n == 1 else f"s[{r}:{r + n - 1}]"


def fbits(x):
    import struct
    return "0x%08x" % struct.unpack("<I", struct.pack("<f", x))[0]


def generate(stamps=False, g0=5, gfin=0, touch=0, force_slow=False, ncode=12):
    E = Emit()
    V = Regs(1, 255)
    S = Regs(4, 101)
    sX, sK, sV, sWQ, sWO, sW1, sW3, sW2, sOUT, sWS = [S(n, 4) for n in "X K V WQ WO W1 W3 W2 OUT WS".split()]
    sG, sJ, sA, sB, sW, sGA = [S(n) for n in "g j a b w ga".split()]
    sT = [S(f"T{i}") for i in range(4)]
    sTA = [S("TA0"), S("TA1")]
    sSpin, sKV, sLR, sM0, sO, sTmp, sTmp2, sXcc, sHi, sNeg2, sFFm = [S(n) for n in
        "spin kv lr m0 o tmp tmp2 xcc hi neg2 ffm".split()]
    sCD, sPR, sAQ = S("cd"), S("pr"), S("aq")
    sPair = S("pair", 2)
    sPc = S("pc", 2)
    sST = S("stamp", 2 * 14, 2) if stamps else None
    nst = [0]
    stamp_names = []

    def stamp(name):
        if not stamps:
            return
        k = nst[0]
        nst[0] += 1
        if len(stamp_names) <= k:
            stamp_names.append(name)
        r = sST + 2 * k if k < 14 else sX + 2 * (k - 14)
        assert k < 14 + 16
        E(f"s_memtime {s(r, 2)}")

    vL16, vN, vRG, vL = V("l16"), V("n"), V("rg"), V("l")
    aQ2st, aBst, aMst, aMld, aMld2, aCst, aEst, aSst, aSld, aOut = [V(n) for n in
        "aQ2st aBst aMst aMld aMld2 aCst aEst aSst aSld aOut".split()]
    lXw, lXr, lHw, lHr, lQw, lQr, lPw, lMw, lMr, lWt = [V(n) for n in "lXw lXr lHw lHr lQw lQr lPw lMw lMr lWt".split()]
    lPr = V("lPr", 4)
    lVt = V("lVt", 2)
    vTag, vXo, vMean, vRs, vSc, vWoff, vW13 = [V(n) for n in "tag xo mean rs sc woff w13".split()]
    vCsq = V("csq", 4)
    vSel, vSel1, vOnes = V("sel", 4), V("sel1", 4), V("ones", 4)
    rWQ, rK, rV, rWO, rW1, rW3, rW2 = V("WQ", 16), V("K", 32), V("V", 32), V("WO", 16), V("W1", 8), V("W3", 8), V("W2", 8)
    G = V("G", 16)
    OP = V("OP", 16)
    AC = V("AC", 12)
    SW = V("SW", 8)
    T = V("T", 16)
    mf = "v_mfma_f32_16x16x32_bf16"

    def bf16r(d, a):
        E(f"v_cvt_pk_bf16_f32 {v(d)}, {v(a)}, {v(a)}")
        E(f"v_and_b32 {v(d)}, {s(sHi)}, {v(d)}")

    def spin():
        E(f"s_sub_u32 {s(sSpin)}, {s(sSpin)}, 1")
        E("s_cbranch_scc1 L_end")

    def dma(voff, srd, soff, imm=0):
        E(f"buffer_load_dwordx4 {v(voff)}, {s(srd, 4)}, {s(soff)} offen offset:{imm} nt lds")

    def stats_tail(u, u2):
        E(f"v_mov_b32 {v(u2)}, {v(u)}")
        E(f"v_permlane16_swap_b32 {v(u)}, {v(u2)}")
        E(f"v_add_f32 {v(u)}, {v(u)}, {v(u2)}")
        for c in ("row_ror:8", "row_ror:4", "quad_perm:[2,3,0,1]", "quad_perm:[1,0,3,2]"):
            E(f"v_add_f32_dpp {v(u)}, {v(u)}, {v(u)} {c}")
        E(f"v_mul_f32 {v(u)}, {fbits(1 / 512)}, {v(u)}")
        E(f"v_mov_b32 {v(u2)}, {v(u)}")
        E(f"v_permlane32_swap_b32 {v(u)}, {v(u2)}")
        E(f"v_fma_f32 {v(u2)}, -{v(u)}, {v(u)}, {v(u2)}")
        E(f"v_max_f32 {v(u2)}, 0, {v(u2)}")
        bf16r(vMean, u)
        bf16r(u2, u2)
        E(f"v_add_f32 {v(u2)}, {fbits(1e-5)}, {v(u2)}")
        bf16r(u2, u2)
        E(f"v_sqrt_f32 {v(u2)}, {v(u2)}")
        bf16r(u2, u2)
        E(f"v_rcp_f32 {v(vRs)}, {v(u2)}")

    E("s_cmp_ge_u32 s2, 256")
    E("s_cbranch_scc1 L_end")
    for r, off in ((sX, 0), (sWQ, 24), (sWS, 88), (sK, 8), (sV, 16), (sWO, 32), (sW1, 48), (sW3, 56), (sW2, 64), (sOUT, 72)):
        E(f"s_load_dwordx2 {s(r, 2)}, s[0:1], {off}")
    if stamps:
        E(f"s_memrealtime {s(sPair, 2)}")
    stamp("start")
    E(f"s_getpc_b64 {s(sPc, 2)}")
    E(f"s_lshr_b32 {s(sJ)}, s2, 3")
    E(f"v_lshlrev_b32 {v(T)}, 4, v0")
    E(f"s_mul_i32 {s(sTmp)}, {s(sJ)}, {int(2 ** 16 / (ncode // 4)) + 1}")
    E(f"s_lshr_b32 {s(sTmp)}, {s(sTmp)}, 16")
    E(f"s_mul_i32 {s(sTmp)}, {s(sTmp)}, {ncode // 4}")
    E(f"s_sub_u32 {s(sTmp)}, {s(sJ)}, {s(sTmp)}")
    E(f"s_lshl_b32 {s(sTmp)}, {s(sTmp)}, 12")
    E(f"v_add_u32 {v(T)}, {s(sTmp)}, {v(T)}")
    E(f"s_and_b32 {s(sPc)}, {s(sPc)}, 0xffffff00")
    E(f"global_load_dwordx4 {v(G, 4)}, {v(T)}, {s(sPc, 2)}")
    E(f"v_lshrrev_b32 {v(T + 1)}, 6, v0")
    E(f"s_and_b32 {s(sG)}, s2, 7")
    E(f"v_readfirstlane_b32 {s(sW)}, {v(T + 1)}")
    E(f"s_lshr_b32 {s(sA)}, s2, 6")
    E(f"s_and_b32 {s(sB)}, {s(sJ)}, 7")
    E(f"s_lshl_b32 {s(sGA)}, {s(sG)}, 2")
    E(f"s_add_u32 {s(sGA)}, {s(sGA)}, {s(sA)}")
    E(f"v_and_b32 {v(vN)}, 15, v0")
    E(f"v_bfe_u32 {v(vRG)}, v0, 4, 2")
    E(f"v_and_b32 {v(vL)}, 63, v0")
    E(f"v_lshlrev_b32 {v(vL16)}, 4, {v(vL)}")
    sizes = {sX: 1024, sK: 134217728, sV: 134217728, sWQ: 4194304, sWO: 4194304, sW1: 1835008, sW3: 1835008,
             sW2: 1835008, sOUT: 1024, sWS: WS_USED}
    for r in (sX, sWQ, sWS, sK):
        E(f"s_mov_b32 {s(r + 2)}, {sizes[r]}")
        E(f"s_mov_b32 {s(r + 3)}, 0x20000")
    E(f"v_and_b32 {v(T + 2)}, 3, v0")
    E(f"v_lshl_add_u32 {v(T + 2)}, {v(T + 2)}, 2, {v(vRG)}")
    E(f"v_lshl_add_u32 {v(T + 2)}, {v(T + 1)}, 4, {v(T + 2)}")
    E(f"v_lshlrev_b32 {v(lXw)}, 1, {v(T + 2)}")
    E(f"s_lshl_b32 {s(sTmp2)}, {s(sB)}, 7")
    E(f"v_lshrrev_b32 {v(T + 3)}, 4, v0")
    E(f"v_lshlrev_b32 {v(T + 4)}, 2, {v(vRG)}")
    E(f"v_xor_b32 {v(T + 4)}, {v(T + 4)}, {v(vN)}")
    E(f"v_lshlrev_b32 {v(T + 4)}, 4, {v(T + 4)}")
    E(f"v_lshl_add_u32 {v(T + 4)}, {v(T + 3)}, 13, {v(T + 4)}")
    E(f"s_lshl_b32 {s(sO)}, {s(sB)}, 19")
    E(f"s_lshl_b32 {s(sTmp)}, {s(sGA)}, 8")
    E(f"s_add_u32 {s(sO)}, {s(sO)}, {s(sTmp)}")
    E(f"s_lshl_b32 {s(sM0)}, {s(sW)}, 10")
    E(f"s_mov_b32 m0, {s(sM0)}")
    E("s_waitcnt lgkmcnt(0)")
    E(f"buffer_load_dwordx4 {v(G + 4, 4)}, {v(vL16)}, {s(sX, 4)}, 0 offen")
    E(f"buffer_load_ushort {v(vXo)}, {v(lXw)}, {s(sX, 4)}, {s(sTmp2)} offen")
    for i in range(4):
        dma(T + 4, sWQ, sO)
        if i < 3:
            E(f"s_add_u32 m0, m0, 4096")
            E(f"s_add_u32 {s(sO)}, {s(sO)}, {16 * 8192}")
    E(f"s_load_dword {s(sT[0])}, {s(sWS, 2)}, {WS_EPOCH}")
    E(f"s_mul_i32 {s(sLR)}, {s(sG)}, {LR_SIZE}")
    E(f"s_add_u32 {s(sLR)}, {s(sLR)}, {WS_LR}")
    E(f"s_mul_i32 {s(sTmp)}, {s(sJ)}, 5120")
    E(f"s_add_u32 {s(sTmp)}, {s(sTmp)}, {s(sLR)}")
    for i in range(4):
        E(f"v_mov_b32 {v(T + 8 + i)}, -1")
    E(f"v_lshlrev_b32 {v(T + 5)}, 4, v0")
    E(f"v_lshlrev_b32 {v(T + 6)}, 2, v0")
    E(f"s_add_u32 {s(sTmp2)}, {s(sTmp)}, 4096")
    E(f"buffer_store_dwordx4 {v(T + 8, 4)}, {v(T + 5)}, {s(sWS, 4)}, {s(sTmp)} offen sc1")
    E(f"buffer_store_dword {v(T + 8)}, {v(T + 6)}, {s(sWS, 4)}, {s(sTmp2)} offen sc1")
    E(f"s_lshl_b32 {s(sKV)}, {s(sG)}, 24")
    E(f"s_lshl_b32 {s(sTmp)}, {s(sJ)}, 15")
    E(f"s_add_u32 {s(sKV)}, {s(sKV)}, {s(sTmp)}")
    E(f"s_add_u32 {s(sKV)}, {s(sKV)}, {61440 * 256}")
    E(f"s_lshl_b32 {s(sTmp)}, {s(sW)}, 13")
    E(f"s_add_u32 {s(sO)}, {s(sKV)}, {s(sTmp)}")
    E(f"s_add_u32 m0, {s(sTmp)}, {L_K}")
    vKo = OP
    E(f"v_xor_b32 {v(vKo)}, {v(vN)}, {v(vRG)}")
    E(f"v_lshlrev_b32 {v(vKo)}, 4, {v(vKo)}")
    E(f"v_lshl_add_u32 {v(vKo)}, {v(vRG)}, 8, {v(vKo)}")
    for i in range(1, 4):
        E(f"v_xor_b32 {v(vKo + i)}, {i * 64}, {v(vKo)}")
    for i in range(4):
        dma(vKo + i, sK, sO, i * 1024)
    stamp("issued")
    for r in (sV, sWO, sW1, sW3, sW2, sOUT):
        E(f"s_mov_b32 {s(r + 2)}, {sizes[r]}")
        E(f"s_mov_b32 {s(r + 3)}, 0x20000")
    E(f"s_mov_b32 {s(sHi)}, 0xffff0000")
    E(f"s_mov_b32 {s(sNeg2)}, 0xfffffffe")
    E(f"s_mov_b32 {s(sFFm)}, 0xffffff00")
    E(f"s_mov_b32 {s(sSpin)}, {SPIN}")
    E(f"s_getreg_b32 {s(sXcc)}, hwreg(HW_REG_XCC_ID, 0, 4)")
    vC, vQ4, vH, vWv, vOob = T + 2, T + 3, T + 2, T + 1, T + 7
    E(f"v_and_b32 {v(vC)}, 3, v0")
    E(f"v_bfe_u32 {v(vQ4)}, v0, 2, 2")
    E(f"v_mov_b32 {v(vOob)}, {OOB}")
    E(f"v_mov_b32 {v(T + 6)}, {L_DUM}")
    E(f"v_mov_b32 {v(vOnes)}, 0x3f803f80")
    for i in range(1, 4):
        E(f"v_mov_b32 {v(vOnes + i)}, {v(vOnes)}")
    E(f"v_and_b32 {v(T + 4)}, 31, v0")
    E(f"v_lshlrev_b32 {v(T + 4)}, 2, {v(T + 4)}")
    E(f"v_add_u32 {v(T + 4)}, {L_ONES}, {v(T + 4)}")
    E(f"ds_write_b32 {v(T + 4)}, {v(vOnes)}")
    E(f"v_lshlrev_b32 {v(T + 4)}, 2, {v(vC)}")
    E(f"v_add_u32 {v(T + 4)}, {L_ZZ}, {v(T + 4)}")
    E(f"v_mov_b32 {v(T + 5)}, 0")
    E(f"ds_write_b32 {v(T + 4)}, {v(T + 5)}")
    E(f"s_lshl_b32 {s(sTmp)}, {s(sB)}, 7")
    E(f"v_add_u32 {v(aOut)}, {s(sTmp)}, {v(lXw)}")
    E(f"v_cmp_eq_u32 vcc, 0, {v(vQ4)}")
    E(f"v_add_u32 {v(lXw)}, {L_XS}, {v(lXw)}")
    E(f"v_cndmask_b32 {v(aOut)}, {v(vOob)}, {v(aOut)}, vcc")
    E(f"v_lshlrev_b32 {v(T + 4)}, 4, {v(vRG)}")
    E(f"v_add_u32 {v(lHr)}, {L_HS}, {v(T + 4)}")
    E(f"v_and_b32 {v(T + 5)}, 1, v0")
    E(f"v_lshl_add_u32 {v(lXr)}, {v(T + 5)}, 7, {v(T + 4)}")
    E(f"v_add_u32 {v(lXr)}, {L_XS}, {v(lXr)}")
    E(f"v_mul_u32_u24 {v(lQr)}, 288, {v(vH)}")
    E(f"v_add_u32 {v(lQr)}, {v(lQr)}, {v(T + 4)}")
    E(f"v_add_u32 {v(lQr)}, {L_QR}, {v(lQr)}")
    E(f"v_cmp_gt_u32 vcc, 32, {v(vL)}")
    E(f"v_mul_u32_u24 {v(T + 8)}, 288, {v(vWv)}")
    E(f"v_add_u32 {v(T + 8)}, {L_QR}, {v(T + 8)}")
    E(f"v_lshl_add_u32 {v(T + 9)}, {v(vN)}, 1, {v(vRG)}")
    E(f"v_lshl_add_u32 {v(T + 9)}, {v(T + 9)}, 3, {v(T + 8)}")
    E(f"v_lshl_add_u32 {v(T + 10)}, {v(vN)}, 3, {v(T + 6)}")
    E(f"v_cndmask_b32 {v(lQw)}, {v(T + 10)}, {v(T + 9)}, vcc")
    vQw1 = SW + 7
    E(f"v_lshl_add_u32 {v(T + 9)}, {v(vRG)}, 4, {v(vN)}")
    E(f"v_lshl_add_u32 {v(T + 9)}, {v(T + 9)}, 3, {v(T + 8)}")
    E(f"v_cndmask_b32 {v(vQw1)}, {v(T + 10)}, {v(T + 9)}, vcc")
    E(f"v_lshl_add_u32 {v(T + 9)}, {v(vWv)}, 4, {v(vN)}")
    E(f"v_lshlrev_b32 {v(T + 9)}, 1, {v(T + 9)}")
    E(f"v_add_u32 {v(T + 9)}, {L_HS}, {v(T + 9)}")
    E(f"v_cndmask_b32 {v(lHw)}, {v(T + 10)}, {v(T + 9)}, vcc")
    E(f"v_lshl_add_u32 {v(T + 8)}, {v(vRG)}, 2, {v(vH)}")
    E(f"v_lshlrev_b32 {v(T + 8)}, 4, {v(T + 8)}")
    E(f"v_add_u32 {v(T + 8)}, {L_PP}, {v(T + 8)}")
    E(f"v_lshl_add_u32 {v(T + 9)}, {v(vWv)}, 8, {v(T + 8)}")
    E(f"v_lshl_add_u32 {v(lPw)}, {v(vQ4)}, 2, {v(T + 9)}")
    E(f"v_lshl_add_u32 {v(T + 8)}, {v(vQ4)}, 8, {v(T + 8)}")
    E(f"v_mov_b32 {v(T + 9)}, {L_ZZ}")
    for i in range(4):
        E(f"v_cmp_eq_u32 vcc, {i}, {v(vQ4)}")
        E(f"v_cndmask_b32 {v(lPr + i)}, {v(T + 9)}, {v(T + 8)}, vcc")
    E(f"v_lshl_add_u32 {v(T + 8)}, {v(vWv)}, 2, {v(vH)}")
    E(f"v_lshlrev_b32 {v(T + 8)}, 2, {v(T + 8)}")
    E(f"v_add_u32 {v(lMw)}, {L_MM}, {v(T + 8)}")
    E(f"v_lshlrev_b32 {v(T + 8)}, 2, {v(vN)}")
    E(f"v_add_u32 {v(lMr)}, {L_MM}, {v(T + 8)}")
    E(f"v_cmp_gt_u32 vcc, 16, {v(vL)}")
    E(f"s_lshl_b32 {s(sTmp)}, {s(sGA)}, 6")
    E(f"v_add_u32 {v(T + 8)}, {s(sTmp)}, {v(T + 8)}")
    E(f"v_cndmask_b32 {v(aCst)}, {v(vOob)}, {v(T + 8)}, vcc")
    E(f"s_lshl_b32 {s(sTmp)}, {s(sB)}, 8")
    E(f"v_add_u32 {v(T + 8)}, {s(sTmp)}, {v(vL16)}")
    E(f"v_cndmask_b32 {v(aEst)}, {v(vOob)}, {v(T + 8)}, vcc")
    E(f"v_lshrrev_b32 {v(T + 8)}, 1, {v(vQ4)}")
    E(f"v_and_b32 {v(T + 9)}, 1, {v(vRG)}")
    E(f"v_lshl_add_u32 {v(T + 8)}, {v(T + 9)}, 1, {v(T + 8)}")
    E(f"v_xor_b32 {v(T + 8)}, {v(T + 8)}, {v(vWv)}")
    E(f"v_lshl_add_u32 {v(T + 8)}, {v(T + 8)}, 2, {v(vC)}")
    E(f"v_lshl_add_u32 {v(T + 9)}, {v(vRG)}, 3, {v(vQ4)}")
    E(f"v_lshl_add_u32 {v(T + 8)}, {v(T + 9)}, 4, {v(T + 8)}")
    E(f"v_lshlrev_b32 {v(T + 8)}, 3, {v(T + 8)}")
    E(f"v_add_u32 {v(lWt)}, {L_WO}, {v(T + 8)}")
    vQt = SW + 6
    E(f"v_xor_b32 {v(T + 8)}, {v(vWv)}, {v(vQ4)}")
    E(f"v_lshl_add_u32 {v(T + 8)}, {v(T + 8)}, 2, {v(vC)}")
    E(f"v_lshl_add_u32 {v(T + 8)}, {v(T + 9)}, 4, {v(T + 8)}")
    E(f"v_lshlrev_b32 {v(vQt)}, 4, {v(T + 8)}")
    E(f"v_lshl_add_u32 {v(T + 9)}, {v(vRG)}, 2, {v(vQ4)}")
    E(f"v_and_b32 {v(T + 8)}, 7, {v(T + 9)}")
    E(f"v_lshlrev_b32 {v(T + 10)}, 1, {v(vWv)}")
    E(f"v_xor_b32 {v(T + 8)}, {v(T + 8)}, {v(T + 10)}")
    E(f"v_lshl_add_u32 {v(T + 8)}, {v(T + 8)}, 2, {v(vC)}")
    E(f"v_lshl_add_u32 {v(T + 8)}, {v(T + 9)}, 5, {v(T + 8)}")
    E(f"v_lshlrev_b32 {v(T + 8)}, 3, {v(T + 8)}")
    E(f"v_add_u32 {v(lVt)}, {L_V}, {v(T + 8)}")
    E(f"v_xor_b32 {v(lVt + 1)}, 32, {v(lVt)}")
    E(f"v_lshrrev_b32 {v(T + 8)}, 1, {v(vQ4)}")
    E(f"v_lshl_add_u32 {v(T + 8)}, {v(vWv)}, 1, {v(T + 8)}")
    E(f"v_lshl_add_u32 {v(T + 8)}, {v(T + 8)}, 2, {v(vRG)}")
    E(f"v_and_b32 {v(T + 9)}, 1, {v(vQ4)}")
    E(f"v_lshl_add_u32 {v(T + 8)}, {v(T + 8)}, 1, {v(T + 9)}")
    E(f"v_lshlrev_b32 {v(T + 8)}, 2, {v(T + 8)}")
    E(f"v_lshl_add_u32 {v(T + 8)}, {v(vH)}, 13, {v(T + 8)}")
    E(f"s_lshl_b32 {s(sTmp)}, {s(sJ)}, 8")
    E(f"v_add_u32 {v(aBst)}, {s(sTmp)}, {v(T + 8)}")
    E(f"s_lshl_b32 {s(sTmp)}, {s(sJ)}, 4")
    E(f"s_add_u32 {s(sTmp)}, {s(sTmp)}, {PR_ML}")
    E(f"v_cmp_gt_u32 vcc, 4, v0")
    E(f"v_lshl_add_u32 {v(T + 8)}, {v(vH)}, 2, {s(sTmp)}")
    E(f"v_cndmask_b32 {v(aMst)}, {v(vOob)}, {v(T + 8)}, vcc")
    E(f"s_lshl_b32 {s(sTmp)}, {s(sA)}, 2")
    E(f"s_add_u32 {s(sTmp)}, {s(sTmp)}, {PR_ML}")
    E(f"v_and_b32 {v(T + 8)}, 31, v0")
    E(f"v_lshl_add_u32 {v(aMld)}, {v(T + 8)}, 4, {s(sTmp)}")
    E(f"v_lshl_add_u32 {v(T + 9)}, {v(vWv)}, 3, {v(vRG)}")
    E(f"v_lshl_add_u32 {v(aMld2)}, {v(T + 9)}, 4, {s(sTmp)}")
    E(f"v_cmp_eq_u32 vcc, 0, {v(T + 8)}")
    E(f"s_lshl_b32 {s(sTmp)}, {s(sA)}, 9")
    E(f"s_add_u32 {s(sTmp)}, {s(sTmp)}, {PR_ST}")
    E(f"v_lshl_add_u32 {v(aSld)}, {v(vL)}, 2, {s(sTmp)}")
    E(f"s_lshl_b32 {s(sTmp2)}, {s(sB)}, 2")
    E(f"s_add_u32 {s(sTmp2)}, {s(sTmp2)}, {s(sW)}")
    E(f"s_lshl_b32 {s(sCD)}, {s(sTmp2)}, 12")
    E(f"s_add_u32 {s(sCD)}, {s(sCD)}, {WS_CD}")
    E(f"s_lshl_b32 {s(sTmp2)}, {s(sTmp2)}, 2")
    E(f"v_add_u32 {v(T + 8)}, {s(sTmp2)}, {v(aSld)}")
    E(f"v_cndmask_b32 {v(aSst)}, {v(vOob)}, {v(T + 8)}, vcc")
    E(f"s_lshl_b32 {s(sTmp)}, {s(sA)}, 4")
    E(f"s_add_u32 {s(sTmp)}, {s(sTmp)}, {s(sB)}")
    E(f"s_lshl_b32 {s(sTmp)}, {s(sTmp)}, 8")
    E(f"v_lshrrev_b32 {v(T + 8)}, 4, v0")
    E(f"v_lshl_add_u32 {v(T + 9)}, {v(T + 8)}, 4, {s(sTmp)}")
    E(f"v_cmp_eq_u32 vcc, 0, {v(vN)}")
    vA1st, vCsSt, vA1ld = SW + 5, SW + 4, SW + 3
    E(f"s_lshl_b32 {s(sTmp)}, {s(sGA)}, 3")
    E(f"s_add_u32 {s(sTmp)}, {s(sTmp)}, {s(sB)}")
    E(f"s_lshl_b32 {s(sTmp)}, {s(sTmp)}, 9")
    E(f"s_add_u32 {s(sTmp)}, {s(sTmp)}, {WS_A1}")
    E(f"v_cndmask_b32 {v(aQ2st)}, {v(vOob)}, {v(T + 9)}, vcc")
    E(f"v_lshl_add_u32 {v(T + 10)}, {v(T + 8)}, 5, {s(sTmp)}")
    E(f"v_cndmask_b32 {v(vA1st)}, {v(vOob)}, {v(T + 10)}, vcc")
    E(f"v_cmp_eq_u32 vcc, 1, {v(vN)}")
    E(f"s_lshl_b32 {s(sTmp)}, {s(sG)}, 2")
    E(f"s_add_u32 {s(sTmp)}, {s(sTmp)}, {s(sW)}")
    E(f"v_cndmask_b32 {v(vCsSt)}, {v(vOob)}, {v(T + 9)}, vcc")
    E(f"s_lshl_b32 {s(sTmp)}, {s(sTmp)}, 12")
    E(f"s_add_u32 {s(sTmp)}, {s(sTmp)}, {WS_A1}")
    E(f"v_lshl_add_u32 {v(T + 8)}, {v(vRG)}, 5, {v(vN)}")
    E(f"v_lshl_add_u32 {v(vA1ld)}, {v(T + 8)}, 4, {s(sTmp)}")
    E(f"s_lshl_b32 {s(sAQ)}, {s(sW)}, 12")
    E(f"s_add_u32 {s(sAQ)}, {s(sAQ)}, {s(sLR)}")
    E(f"s_add_u32 {s(sPR)}, {s(sLR)}, {LR_PR}")
    E(f"v_and_b32 {v(T + 8)}, 1, v0")
    E(f"v_lshlrev_b32 {v(T + 8)}, 4, {v(T + 8)}")
    E(f"v_mov_b32 {v(T + 9)}, 0xffff")
    E(f"v_lshlrev_b32 {v(T + 8)}, {v(T + 8)}, {v(T + 9)}")
    E(f"v_lshrrev_b32 {v(T + 9)}, 1, {v(vN)}")
    for d in range(4):
        E(f"v_cmp_eq_u32 vcc, {d}, {v(T + 9)}")
        E(f"v_cndmask_b32 {v(vSel + d)}, 0, {v(T + 8)}, vcc")
        E(f"v_and_b32 {v(vSel1 + d)}, {v(vOnes)}, {v(vSel + d)}")
    vVo = SW + 2
    E(f"v_lshrrev_b32 {v(T + 8)}, 4, v0")
    E(f"v_and_b32 {v(T + 9)}, 7, {v(T + 8)}")
    E(f"v_lshlrev_b32 {v(T + 9)}, 1, {v(T + 9)}")
    E(f"v_xor_b32 {v(T + 9)}, {v(T + 9)}, {v(vN)}")
    E(f"v_lshl_add_u32 {v(T + 9)}, {v(T + 8)}, 4, {v(T + 9)}")
    E(f"v_lshlrev_b32 {v(vVo)}, 4, {v(T + 9)}")
    E(f"v_and_b32 {v(T + 8)}, 1, {v(vRG)}")
    E(f"v_and_b32 {v(T + 9)}, 1, {v(vWv)}")
    E(f"v_lshl_add_u32 {v(T + 8)}, {v(T + 9)}, 1, {v(T + 8)}")
    E(f"v_lshlrev_b32 {v(T + 8)}, 1, {v(T + 8)}")
    E(f"v_and_b32 {v(T + 9)}, 7, v0")
    E(f"v_xor_b32 {v(T + 8)}, {v(T + 8)}, {v(T + 9)}")
    E(f"v_lshlrev_b32 {v(T + 8)}, 4, {v(T + 8)}")
    E(f"v_lshrrev_b32 {v(T + 9)}, 3, v0")
    E(f"v_lshl_add_u32 {v(vWoff)}, {v(T + 9)}, 10, {v(T + 8)}")
    E(f"v_mul_u32_u24 {v(T + 9)}, 3584, {v(T + 9)}")
    E(f"v_add_u32 {v(vW13)}, {v(T + 9)}, {v(T + 8)}")
    E("s_waitcnt lgkmcnt(0)")
    E(f"s_and_b32 {s(sTmp)}, {s(sT[0])}, 0x7f7f7f7f")
    E(f"s_add_u32 {s(sTmp)}, {s(sTmp)}, 0x674f1b35")
    E(f"s_and_b32 {s(sT[0])}, {s(sT[0])}, 0x80808080")
    E(f"s_xor_b32 {s(sT[0])}, {s(sT[0])}, {s(sTmp)}")
    for i in range(1, 4):
        E(f"s_lshr_b32 {s(sT[i])}, {s(sT[0])}, {8 * i}")
    E(f"s_and_b32 {s(sTA[0])}, {s(sT[0])}, 0xbff0")
    E(f"s_or_b32 {s(sTA[0])}, {s(sTA[0])}, {s(sXcc)}")
    E(f"s_and_b32 {s(sTA[1])}, {s(sT[2])}, 0xbff0")
    E(f"s_or_b32 {s(sTA[1])}, {s(sTA[1])}, {s(sXcc)}")
    E(f"v_lshlrev_b32 {v(T + 8)}, 3, {v(vC)}")
    E(f"v_lshrrev_b32 {v(vTag)}, {v(T + 8)}, {s(sT[0])}")
    E(f"v_and_b32 {v(vTag)}, 0xff, {v(vTag)}")
    E("s_waitcnt vmcnt(10)")
    X = G + 4
    E(f"v_lshlrev_b32 {v(vXo)}, 16, {v(vXo)}")
    for i in range(4):
        E(f"v_lshlrev_b32 {v(T + 8 + 2 * i)}, 16, {v(X + i)}")
        E(f"v_and_b32 {v(T + 9 + 2 * i)}, {s(sHi)}, {v(X + i)}")
    E(f"v_add_f32 {v(T)}, {v(T + 8)}, {v(T + 9)}")
    E(f"v_mul_f32 {v(T + 1)}, {v(T + 8)}, {v(T + 8)}")
    E(f"v_fmac_f32 {v(T + 1)}, {v(T + 9)}, {v(T + 9)}")
    for i in range(2, 8):
        E(f"v_add_f32 {v(T)}, {v(T)}, {v(T + 8 + i)}")
        E(f"v_fmac_f32 {v(T + 1)}, {v(T + 8 + i)}, {v(T + 8 + i)}")
    E(f"v_permlane32_swap_b32 {v(T)}, {v(T + 1)}")
    E(f"v_add_f32 {v(T)}, {v(T)}, {v(T + 1)}")
    stats_tail(T, T + 1)
    E(f"v_sub_f32 {v(T)}, {v(vXo)}, {v(vMean)}")
    bf16r(T, T)
    E(f"v_mul_f32 {v(T)}, {v(T)}, {v(vRs)}")
    E(f"v_cvt_pk_bf16_f32 {v(T)}, {v(T)}, {v(T)}")
    E(f"ds_write_b16 {v(lXw)}, {v(T)}")
    E(f"v_mov_b32 {v(vSc)}, {fbits(math.log2(math.e) / math.sqrt(128.0))}")
    stamp("setup")
    E("s_waitcnt vmcnt(4)")
    stamp("wq")
    E(f"s_add_u32 m0, m0, 4096")
    E(f"s_add_u32 {s(sO)}, {s(sO)}, 4096")
    for i in range(4):
        dma(vKo + i, sK, sO, i * 1024)
    E("s_waitcnt lgkmcnt(0)")
    E("s_barrier")
    for sidx in range(2):
        E(f"ds_read_b128 {v(OP + 4 * sidx, 4)}, {v(lXr)} offset:{64 * sidx}")
    for t in range(2):
        for sidx in range(2):
            for hh in range(2):
                E(f"ds_read_b64_tr_b16 {v(rWQ + (t * 2 + sidx) * 4 + 2 * hh, 2)}, {v(vQt)} offset:{L_WQ + sidx * 8192 + hh * 1024 + t * 8}")
    E("s_waitcnt lgkmcnt(0)")
    for sidx in range(2):
        for t in range(2):
            E(f"{mf} {v(AC + 4 * t, 4)}, {v(rWQ + (t * 2 + sidx) * 4, 4)}, {v(OP + 4 * sidx, 4)}, {v(AC + 4 * t, 4) if sidx else 0}")
    for i in range(4):
        E(f"v_cvt_pk_bf16_f32 {v(vCsq + i)}, {v(AC + 2 * i)}, {v(AC + 2 * i + 1)}")
    for i in range(4):
        E(f"v_lshl_or_b32 {v(T + 8 + 2 * i)}, {v(vCsq + i)}, 16, {s(sTA[0])}")
        E(f"v_and_b32 {v(T + 9 + 2 * i)}, {s(sHi)}, {v(vCsq + i)}")
        E(f"v_or_b32 {v(T + 9 + 2 * i)}, {s(sTA[1])}, {v(T + 9 + 2 * i)}")
        E(f"v_min_u32 {v(vCsq + i)}, {s(sNeg2)}, {v(vCsq + i)}")
    E(f"buffer_store_dwordx4 {v(T + 8, 4)}, {v(vA1st)}, {s(sWS, 4)}, 0 offen sc1")
    E(f"buffer_store_dwordx4 {v(T + 12, 4)}, {v(vA1st)}, {s(sWS, 4)}, 0 offen offset:16 sc1")
    stamp("A1st")
    vKr = T
    E(f"v_xor_b32 {v(vKr)}, {v(vN)}, {v(vRG)}")
    E(f"v_lshl_add_u32 {v(vKr)}, {v(vN)}, 4, {v(vKr)}")
    E(f"s_lshl_b32 {s(sTmp)}, {s(sW)}, 13")
    E(f"s_add_u32 {s(sTmp)}, {s(sTmp)}, {L_K}")
    E(f"v_lshl_add_u32 {v(vKr)}, {v(vKr)}, 4, {s(sTmp)}")
    for i in range(1, 4):
        E(f"v_xor_b32 {v(vKr + i)}, {64 * i}, {v(vKr)}")
    SA = OP
    E(f"v_mov_b32 {v(T + 4)}, 1.0")
    for i in range(8):
        E(f"v_cmp_eq_u32 vcc, {i}, {v(vN)}")
        E(f"v_cndmask_b32 {v(SA + i)}, 0, {v(T + 4)}, vcc")
    E(f"s_add_u32 m0, {s(sM0)}, {L_V}")
    E(f"s_mov_b32 {s(sO)}, {s(sKV)}")
    E("s_waitcnt vmcnt(6)")

    def dmaV():
        for i in range(4):
            dma(vVo, sV, sO)
            E(f"s_add_u32 m0, m0, 4096")
            E(f"s_add_u32 {s(sO)}, {s(sO)}, 4096")
    dmaV()
    for sidx in range(4):
        E(f"ds_read_b128 {v(rK + 4 * sidx, 4)}, {v(vKr + sidx)}")
    E("s_waitcnt vmcnt(6)")
    stamp("K")

    def a1loads():
        for i, o in enumerate((0, 256, 2048, 2304)):
            E(f"buffer_load_dwordx4 {v(G + 4 * i, 4)}, {v(vA1ld)}, {s(sWS, 4)}, 0 offen offset:{o} sc1")
    a1loads()
    dmaV()
    for sidx in range(4):
        E(f"ds_read_b128 {v(rK + 16 + 4 * sidx, 4)}, {v(vKr + sidx)} offset:4096")
    E("s_waitcnt vmcnt(4)")
    E.label("L_a1chk")
    E(f"v_xor_b32 {v(T + 5)}, {s(sTA[0])}, {v(G)}")
    for i in range(1, 16):
        E(f"v_bitop3_b32 {v(T + 5)}, {v(T + 5)}, {v(G + i)}, {s(sTA[i & 1])} bitop3:0xf6")
    E(f"v_and_b32 {v(T + 6)}, 0xfff0, {v(T + 5)}")
    E(f"v_cmp_ne_u32 vcc, 0, {v(T + 6)}")
    E("s_cbranch_vccz L_a1ok")
    spin()
    a1loads()
    E("s_waitcnt vmcnt(0)")
    E("s_branch L_a1chk")
    E.label("L_a1ok")
    stamp("A1ok")
    for i in range(4):
        E(f"{mf} {v(AC, 4)}, {v(SA + 4 * (i & 1), 4)}, {v(G + 4 * i, 4)}, {v(AC, 4) if i else 0}")
    E(f"v_and_b32 {v(T + 6)}, 15, {v(T + 5)}")
    E(f"v_cmp_ne_u32 vcc, 0, {v(T + 6)}")
    E(f"s_lshl_b32 {s(sTmp)}, {s(sW)}, 2")
    E(f"s_add_u32 {s(sTmp)}, {s(sTmp)}, {L_FL}")
    E(f"s_or_b32 {s(sTmp2)}, vcc_lo, vcc_hi")
    E(f"v_mov_b32 {v(T + 6)}, {s(sTmp)}")
    E(f"v_mov_b32 {v(T + 7)}, {s(sTmp2)}")
    E(f"ds_write_b32 {v(T + 6)}, {v(T + 7)}")
    E(f"v_cvt_pk_bf16_f32 {v(T + 8)}, {v(AC)}, {v(AC + 1)}")
    E(f"v_cvt_pk_bf16_f32 {v(T + 9)}, {v(AC + 2)}, {v(AC + 3)}")
    E(f"ds_write_b64 {v(vQw1)}, {v(T + 8, 2)}")
    E(f"v_mov_b32 {v(T + 6)}, {L_FL}")
    E("s_waitcnt lgkmcnt(0)")
    E("s_barrier")
    E(f"ds_read_b128 {v(T + 8, 4)}, {v(T + 6)}")

    def vread(srange):
        for sidx in srange:
            for t in range(2):
                for hh in range(2):
                    E(f"ds_read_b64_tr_b16 {v(rV + (t * 4 + sidx) * 4 + 2 * hh, 2)}, {v(lVt + t)} offset:{sidx * 8192 + hh * 4096}")
    vread((0, 1))
    E("s_waitcnt lgkmcnt(8)")
    E(f"v_or3_b32 {v(T + 8)}, {v(T + 8)}, {v(T + 9)}, {v(T + 10)}")
    E(f"v_or_b32 {v(T + 8)}, {v(T + 8)}, {v(T + 11)}")
    E(f"v_readfirstlane_b32 {s(sTmp)}, {v(T + 8)}")
    E(f"s_cmp_lg_u32 {s(sTmp)}, 0")
    if force_slow:
        E("s_branch L_body_far")
    else:
        E("s_cbranch_scc1 L_body_far")
    st0 = nst[0]

    def body(tag, loc):
        nst[0] = st0
        uid = [0]

        def lab(n):
            uid[0] += 1
            return f"L_{n}{uid[0]}_{tag}"

        def ld4(dst, voff, soff, imm):
            E(f"buffer_load_dwordx4 {v(dst, 4)}, {v(voff)}, {s(sWS, 4)}, {s(soff)} offen offset:{imm} sc1")

        def ld1(dst, voff, soff, imm):
            E(f"buffer_load_dword {v(dst)}, {v(voff)}, {s(sWS, 4)}, {s(soff)} offen offset:{imm} sc1")

        def st(n, src, voff, soff, imm, mod):
            op = {1: "dword", 4: "dwordx4"}[n]
            E(f"buffer_store_{op} {v(src, n)}, {v(voff)}, {s(sWS, 4)}, {s(soff)} offen offset:{imm} {mod}")

        def trw(dst, base, ns):
            for sidx in range(ns):
                for hh in range(2):
                    E(f"ds_read_b64_tr_b16 {v(dst + 4 * sidx + 2 * hh, 2)}, {v(lWt)} offset:{base - L_WO + sidx * 4096 + hh * 512}")

        def attention(p):
            for sidx in range(4):
                E(f"ds_read_b128 {v(OP + 4 * sidx, 4)}, {v(lQr)} offset:{64 * sidx}")
            if p == 0:
                st(4, vCsq, vCsSt, sLR, 2048, loc)
            for sidx in range(4):
                E(f"s_waitcnt lgkmcnt({3 - sidx})")
                for t in range(2):
                    E(f"{mf} {v(AC + 4 * t, 4)}, {v(rK + (t * 4 + sidx) * 4, 4)}, {v(OP + 4 * sidx, 4)}, {v(AC + 4 * t, 4) if sidx else 0}")
            t0, t1, mx, m2 = AC, AC + 4, T, T + 1
            idq = "quad_perm:[0,1,2,3] row_mask:0xf"
            E(f"v_max3_f32 {v(mx)}, {v(t0)}, {v(t0 + 1)}, {v(t0 + 2)}")
            E(f"v_max3_f32 {v(mx)}, {v(mx)}, {v(t0 + 3)}, {v(t1)}")
            E(f"v_max3_f32 {v(mx)}, {v(mx)}, {v(t1 + 1)}, {v(t1 + 2)}")
            E(f"v_max_f32 {v(mx)}, {v(mx)}, {v(t1 + 3)}")
            E(f"v_mov_b32 {v(m2)}, {v(mx)}")
            E(f"v_mov_b32_dpp {v(t0)}, {v(t0 + 2)} {idq} bank_mask:0x2")
            E(f"v_mov_b32_dpp {v(t0 + 1)}, {v(t0 + 3)} {idq} bank_mask:0x2")
            E(f"v_permlane32_swap_b32 {v(mx)}, {v(m2)}")
            E(f"v_max_f32 {v(mx)}, {v(mx)}, {v(m2)}")
            E(f"v_mov_b32 {v(m2)}, {v(mx)}")
            E(f"v_mov_b32_dpp {v(t0)}, {v(t1)} {idq} bank_mask:0x4")
            E(f"v_mov_b32_dpp {v(t0 + 1)}, {v(t1 + 1)} {idq} bank_mask:0x4")
            E(f"v_permlane16_swap_b32 {v(mx)}, {v(m2)}")
            E(f"v_mov_b32_dpp {v(t0)}, {v(t1 + 2)} {idq} bank_mask:0x8")
            E(f"v_mov_b32_dpp {v(t0 + 1)}, {v(t1 + 3)} {idq} bank_mask:0x8")
            E(f"v_max_f32 {v(mx)}, {v(mx)}, {v(m2)}")
            E(f"v_mul_f32 {v(mx)}, {v(mx)}, {v(vSc)}")
            E(f"v_fma_f32 {v(t0)}, {v(t0)}, {v(vSc)}, -{v(mx)}")
            E(f"v_fma_f32 {v(t0 + 1)}, {v(t0 + 1)}, {v(vSc)}, -{v(mx)}")
            E(f"v_exp_f32 {v(t0)}, {v(t0)}")
            E(f"v_exp_f32 {v(t0 + 1)}, {v(t0 + 1)}")
            E(f"ds_write_b32 {v(lMw)}, {v(mx)}")
            E(f"v_cvt_pk_bf16_f32 {v(t0)}, {v(t0)}, {v(t0 + 1)}")
            E(f"ds_write_b32 {v(lPw)}, {v(t0)}")
            if p == 0:
                stamp("sm1")
                E(f"s_add_u32 m0, {s(sM0)}, {L_WO}")
                E(f"s_lshl_b32 {s(sO)}, {s(sGA)}, 17")
                E(f"s_lshl_b32 {s(sTmp)}, {s(sB)}, 7")
                E(f"s_add_u32 {s(sO)}, {s(sO)}, {s(sTmp)}")
                for i in range(4):
                    dma(vWoff, sWO, sO)
                    if i < 3:
                        E(f"s_add_u32 m0, m0, 4096")
                        E(f"s_add_u32 {s(sO)}, {s(sO)}, 32768")
                E("s_waitcnt vmcnt(5)")
                stamp("V")
            E("s_waitcnt lgkmcnt(0)")
            E("s_barrier")
            mw, M, f = T + 2, T + 3, T + 4
            E(f"ds_read_b32 {v(mw)}, {v(lMr)}")
            for sidx in range(4):
                E(f"ds_read_b128 {v(OP + 4 * sidx, 4)}, {v(lPr + sidx)}")
            extra = 0
            if p == 0:
                vread((2, 3))
                extra = 8
            fill = [f"v_max_f32_dpp {v(M)}, {v(mw)}, {v(mw)} row_ror:8",
                    f"v_max_f32_dpp {v(M)}, {v(M)}, {v(M)} row_ror:4",
                    f"v_sub_f32 {v(f)}, {v(mw)}, {v(M)}",
                    f"v_exp_f32 {v(f)}, {v(f)}"]
            for sidx in range(4):
                if p == 0:
                    E(f"s_waitcnt lgkmcnt({[11, 10, 4, 0][sidx]})")
                else:
                    E(f"s_waitcnt lgkmcnt({3 - sidx})")
                for t in range(2):
                    E(f"{mf} {v(AC + 4 * t, 4)}, {v(rV + (t * 4 + sidx) * 4, 4)}, {v(OP + 4 * sidx, 4)}, {v(AC + 4 * t, 4) if sidx else 0}")
                E(fill[sidx])
                if sidx == 1:
                    E(f"v_min_u32 {v(T + 5)}, {s(sNeg2)}, {v(M)}")
                    st(1, T + 5, aMst, sPR, 0, loc)
            for sidx in range(4):
                E(f"{mf} {v(AC + 8, 4)}, {v(vOnes, 4)}, {v(OP + 4 * sidx, 4)}, {v(AC + 8, 4) if sidx else 0}")
            for i in range(8):
                E(f"v_mul_f32 {v(AC + i)}, {v(AC + i)}, {v(f)}")
            y, z = T + 8, T + 12
            for r in range(4):
                E(f"v_add_f32_dpp {v(y + r)}, {v(AC + r)}, {v(AC + r)} row_ror:8 row_mask:0xf bank_mask:0x3")
            for r in range(4):
                E(f"v_add_f32_dpp {v(y + r)}, {v(AC + 4 + r)}, {v(AC + 4 + r)} row_ror:8 row_mask:0xf bank_mask:0xc")
            for e in range(2):
                E(f"v_add_f32_dpp {v(z + e)}, {v(y + e)}, {v(y + e)} row_shl:4 row_mask:0xf bank_mask:0x5")
            E(f"v_mul_f32 {v(T + 6)}, {v(AC + 8)}, {v(f)}")
            for e in range(2):
                E(f"v_add_f32_dpp {v(z + e)}, {v(y + 2 + e)}, {v(y + 2 + e)} row_shr:4 row_mask:0xf bank_mask:0xa")
            E(f"v_cvt_pk_bf16_f32 {v(z)}, {v(z)}, {v(z + 1)}")
            E(f"v_add_f32_dpp {v(T + 6)}, {v(T + 6)}, {v(T + 6)} row_ror:8")
            E(f"v_min_u32 {v(z)}, {s(sNeg2)}, {v(z)}")
            st(1, z, aBst, sPR, PR_B, loc)
            E(f"v_add_f32_dpp {v(T + 6)}, {v(T + 6)}, {v(T + 6)} row_ror:4")
            E(f"v_min_u32 {v(T + 6)}, {s(sNeg2)}, {v(T + 6)}")
            st(1, T + 6, aMst, sPR, 512, loc)
            stamp(f"Bst{p}")

        def oproj(p, ffn_label):
            mA, mU0, mU1, Mg, t2, lA = T, T + 1, T + 2, T + 3, T + 4, T + 5
            E(f"s_lshl_b32 {s(sO)}, {s(sA)}, 2")
            E(f"s_add_u32 {s(sO)}, {s(sO)}, {s(sW)}")
            E(f"s_lshl_b32 {s(sO)}, {s(sO)}, 11")
            E(f"s_add_u32 {s(sO)}, {s(sO)}, {s(sPR)}")
            l1 = lab("m")
            E.label(l1)
            ld1(mA, aMld, sPR, 0)
            ld1(mU0, aMld2, sPR, 0)
            ld1(mU1, aMld2, sPR, 64)
            spin()
            E("s_waitcnt vmcnt(0)")
            E(f"v_max3_u32 {v(t2)}, {v(mA)}, {v(mU0)}, {v(mU1)}")
            E(f"v_cmp_eq_u32 vcc, -1, {v(t2)}")
            E(f"s_cbranch_vccnz {l1}")
            stamp(f"M{p}")

            def oloads():
                ld4(G, vL16, sO, 0)
                ld4(G + 4, vL16, sO, 1024)
                ld1(lA, aMld, sPR, 512)
            oloads()
            E(f"v_max_f32_dpp {v(Mg)}, {v(mA)}, {v(mA)} quad_perm:[1,0,3,2]")
            for c in ("quad_perm:[2,3,0,1]", "row_ror:4", "row_ror:8"):
                E(f"v_max_f32_dpp {v(Mg)}, {v(Mg)}, {v(Mg)} {c}")
            E(f"v_mov_b32 {v(t2)}, {v(Mg)}")
            E(f"v_permlane16_swap_b32 {v(Mg)}, {v(t2)}")
            E(f"v_max_f32 {v(Mg)}, {v(Mg)}, {v(t2)}")
            for r in (mU0, mU1, mA):
                E(f"v_sub_f32 {v(r)}, {v(r)}, {v(Mg)}")
            for r in (mU0, mU1, mA):
                E(f"v_exp_f32 {v(r)}, {v(r)}")
            for r in (mU0, mU1, mA):
                E(f"v_cvt_pk_bf16_f32 {v(r)}, {v(r)}, {v(r)}")
            for d in range(4):
                E(f"v_and_b32 {v(SW + d)}, {v(vSel + d)}, {v(mU0)}")
                E(f"v_and_b32 {v(SW + 4 + d)}, {v(vSel + d)}, {v(mU1)}")
            E(f"v_and_b32 {v(mA)}, {s(sHi)}, {v(mA)}")
            l2, l3 = lab("o"), lab("ok")
            E.label(l2)
            E("s_waitcnt vmcnt(2)")
            E(f"{mf} {v(AC, 4)}, {v(SW, 4)}, {v(G, 4)}, 0")
            E(f"v_max3_u32 {v(t2)}, {v(G)}, {v(G + 1)}, {v(G + 2)}")
            E("s_waitcnt vmcnt(1)")
            E(f"{mf} {v(AC, 4)}, {v(SW + 4, 4)}, {v(G + 4, 4)}, {v(AC, 4)}")
            E(f"v_max3_u32 {v(t2)}, {v(t2)}, {v(G + 3)}, {v(G + 4)}")
            E(f"v_max3_u32 {v(t2)}, {v(t2)}, {v(G + 5)}, {v(G + 6)}")
            E("s_waitcnt vmcnt(0)")
            E(f"v_max3_u32 {v(t2)}, {v(t2)}, {v(G + 7)}, {v(lA)}")
            E(f"v_cmp_eq_u32 vcc, -1, {v(t2)}")
            E(f"s_cbranch_vccz {l3}")
            oloads()
            spin()
            E(f"s_branch {l2}")
            E.label(l3)
            E("s_nop 1")
            E(f"v_cvt_pk_bf16_f32 {v(T + 8)}, {v(AC)}, {v(AC + 1)}")
            E(f"v_cvt_pk_bf16_f32 {v(T + 9)}, {v(AC + 2)}, {v(AC + 3)}")
            E(f"ds_write_b64 {v(lQw)}, {v(T + 8, 2)}")
            stamp(f"B{p}")
            E(f"v_mul_f32 {v(lA)}, {v(lA)}, {v(mA)}")
            if p == 0:
                skip = lab("nof")
                E(f"s_cmp_eq_u32 {s(sG)}, {g0}")
                E(f"s_cbranch_scc1 {skip}")
                E(f"s_cmp_gt_u32 {s(sG)}, {g0}")
                E(f"s_cselect_b32 {s(sTmp)}, 4, 0")
                E(f"s_sub_u32 {s(sTmp)}, {s(sGA)}, {s(sTmp)}")
                E(f"s_mul_i32 {s(sO)}, {s(sB)}, {64 * 3584}")
                E(f"s_lshl_b32 {s(sTmp2)}, {s(sTmp)}, 7")
                E(f"s_add_u32 {s(sO)}, {s(sO)}, {s(sTmp2)}")
                E(f"s_add_u32 {s(sTmp2)}, {s(sO)}, {32 * 3584}")
                E(f"s_add_u32 m0, {s(sM0)}, {L_W1}")
                for srd in (sW1, sW3):
                    dma(vW13, srd, sO)
                    E(f"s_add_u32 m0, m0, 4096")
                    dma(vW13, srd, sTmp2)
                    E(f"s_add_u32 m0, m0, 4096")
                E(f"s_lshl_b32 {s(sO)}, {s(sTmp)}, 16")
                E(f"s_lshl_b32 {s(sTmp2)}, {s(sB)}, 7")
                E(f"s_add_u32 {s(sO)}, {s(sO)}, {s(sTmp2)}")
                dma(vWoff, sW2, sO)
                E(f"s_add_u32 m0, m0, 4096")
                E(f"s_add_u32 {s(sO)}, {s(sO)}, 32768")
                dma(vWoff, sW2, sO)
                E.label(skip)
            E(f"v_add_f32_dpp {v(lA)}, {v(lA)}, {v(lA)} quad_perm:[1,0,3,2]")
            E("s_waitcnt lgkmcnt(0)")
            E("s_barrier")
            if p == 0:
                trw(rWO, L_WO, 4)
            for sidx in range(4):
                E(f"ds_read_b128 {v(OP + 4 * sidx, 4)}, {v(lQr)} offset:{64 * sidx}")
            for c in ("quad_perm:[2,3,0,1]", "row_ror:4", "row_ror:8"):
                E(f"v_add_f32_dpp {v(lA)}, {v(lA)}, {v(lA)} {c}")
            E(f"v_mov_b32 {v(t2)}, {v(lA)}")
            for sidx in range(4):
                E(f"s_waitcnt lgkmcnt({3 - sidx})")
                E(f"{mf} {v(AC, 4)}, {v(OP + 4 * sidx, 4)}, {v(rWO + 4 * sidx, 4)}, {v(AC, 4) if sidx else 0}")
            E(f"v_permlane16_swap_b32 {v(lA)}, {v(t2)}")
            E(f"v_add_f32 {v(lA)}, {v(lA)}, {v(t2)}")
            E(f"v_rcp_f32 {v(lA)}, {v(lA)}")
            E(f"v_add_f32 {v(T + 8)}, {v(AC)}, {v(AC + 1)}")
            E(f"v_add_f32 {v(T + 9)}, {v(AC + 2)}, {v(AC + 3)}")
            E(f"v_add_f32 {v(T + 8)}, {v(T + 8)}, {v(T + 9)}")
            E(f"v_mul_f32 {v(T + 8)}, {v(T + 8)}, {v(lA)}")
            E(f"v_and_or_b32 {v(T + 8)}, {v(T + 8)}, {s(sFFm)}, {v(vTag)}")
            st(1, T + 8, aCst, sCD, 0, "sc1")
            stamp(f"Cst{p}")

        def xred(off, name):
            l1 = lab("x")
            r, c = T + 8, T + 2
            E("s_waitcnt vmcnt(0)")
            E.label(l1)
            ld4(G, vL16, sCD, off)
            ld4(G + 4, vL16, sCD, off + 1024)
            spin()
            E("s_waitcnt vmcnt(1)")
            E(f"v_xor_b32 {v(c)}, {s(sT[0])}, {v(G)}")
            for i in range(1, 4):
                E(f"v_bitop3_b32 {v(c)}, {v(c)}, {v(G + i)}, {s(sT[i])} bitop3:0xf6")
            E("s_waitcnt vmcnt(0)")
            for i in (0, 2, 1, 3):
                E(f"v_add_f32 {v(r + i)}, {v(G + i)}, {v(G + 4 + i)}")
            E(f"v_permlane32_swap_b32 {v(r)}, {v(r + 2)}")
            E(f"v_bitop3_b32 {v(c)}, {v(c)}, {v(G + 4)}, {s(sT[0])} bitop3:0xf6")
            E(f"v_permlane32_swap_b32 {v(r + 1)}, {v(r + 3)}")
            E(f"v_add_f32 {v(r)}, {v(r)}, {v(r + 2)}")
            E(f"v_add_f32 {v(r + 1)}, {v(r + 1)}, {v(r + 3)}")
            E(f"v_bitop3_b32 {v(c)}, {v(c)}, {v(G + 5)}, {s(sT[1])} bitop3:0xf6")
            E(f"v_bitop3_b32 {v(c)}, {v(c)}, {v(G + 6)}, {s(sT[2])} bitop3:0xf6")
            E(f"v_permlane16_swap_b32 {v(r)}, {v(r + 1)}")
            E(f"v_add_f32 {v(r)}, {v(r)}, {v(r + 1)}")
            E(f"v_bitop3_b32 {v(c)}, {v(c)}, {v(G + 7)}, {s(sT[3])} bitop3:0xf6")
            E(f"v_and_b32 {v(c)}, 0xff, {v(c)}")
            E(f"v_add_f32_dpp {v(r)}, {v(r)}, {v(r)} row_ror:8")
            E(f"v_cmp_ne_u32 vcc, 0, {v(c)}")
            E(f"s_cbranch_vccnz {l1}")
            E(f"v_add_f32_dpp {v(r)}, {v(r)}, {v(r)} row_ror:4")
            bf16r(r, r)
            E(f"v_add_f32 {v(r)}, {v(r)}, {v(vXo)}")
            E(f"v_cvt_pk_bf16_f32 {v(T + 1)}, {v(r)}, {v(r)}")

        def xshare(stoff, name, pre=None):
            u, u2 = T + 3, T + 4
            E(f"ds_write_b16 {v(lXw)}, {v(T + 1)}")
            stamp(name)
            E(f"v_and_b32 {v(vXo)}, {s(sHi)}, {v(T + 1)}")
            E(f"v_mov_b32 {v(u)}, {v(vXo)}")
            E(f"v_mul_f32 {v(u2)}, {v(vXo)}, {v(vXo)}")
            E(f"v_permlane32_swap_b32 {v(u)}, {v(u2)}")
            E(f"v_add_f32 {v(u)}, {v(u)}, {v(u2)}")
            E(f"v_mov_b32 {v(u2)}, {v(u)}")
            E("s_waitcnt lgkmcnt(0)")
            E("s_barrier")
            if pre:
                pre()
            for sidx in range(2):
                E(f"ds_read_b128 {v(OP + 4 * sidx, 4)}, {v(lXr)} offset:{64 * sidx}")
            E(f"v_permlane16_swap_b32 {v(u)}, {v(u2)}")
            E(f"v_add_f32 {v(u)}, {v(u)}, {v(u2)}")
            E(f"v_add_f32_dpp {v(u)}, {v(u)}, {v(u)} quad_perm:[1,0,3,2]")
            E(f"v_add_f32_dpp {v(u)}, {v(u)}, {v(u)} quad_perm:[2,3,0,1]")
            E(f"v_min_u32 {v(u)}, {s(sNeg2)}, {v(u)}")
            st(1, u, aSst, sPR, stoff, loc)

        def statpoll(stoff):
            l1 = lab("s")
            E.label(l1)
            ld1(T, aSld, sPR, stoff)
            spin()
            E("s_waitcnt vmcnt(0)")
            E(f"v_cmp_eq_u32 vcc, -1, {v(T)}")
            E(f"s_cbranch_vccnz {l1}")

        def ffn(p):
            E(f"s_lshl_b32 {s(sO)}, {s(sA)}, 2")
            E(f"s_add_u32 {s(sO)}, {s(sO)}, {s(sW)}")
            E(f"s_lshl_b32 {s(sO)}, {s(sO)}, 11")
            E(f"s_add_u32 {s(sO)}, {s(sO)}, {s(sPR)}")
            E(f"s_add_u32 {s(sO)}, {s(sO)}, {PR_E}")
            xred(0, "C")

            def pre():
                trw(rW1, L_W1, 2)
                trw(rW3, L_W3, 2)
            xshare(0, f"C{p}", pre if p == 0 else None)
            for sidx in range(2):
                E(f"s_waitcnt lgkmcnt({1 - sidx})")
                E(f"{mf} {v(AC, 4)}, {v(OP + 4 * sidx, 4)}, {v(rW1 + 4 * sidx, 4)}, {v(AC, 4) if sidx else 0}")
                E(f"{mf} {v(AC + 4, 4)}, {v(OP + 4 * sidx, 4)}, {v(rW3 + 4 * sidx, 4)}, {v(AC + 4, 4) if sidx else 0}")
            if p == 0:
                trw(rW2, L_W2, 2)
            st(4, AC + 2, aEst, sO, 0, loc)
            stamp(f"Est{p}")
            statpoll(0)

            def eloads():
                ld4(G, vL16, sO, 0)
                ld4(G + 4, vL16, sO, 1024)
            eloads()
            stats_tail(T, T + 1)
            nrs = T + 5
            E(f"v_mul_f32 {v(nrs)}, {fbits(-math.log2(math.e))}, {v(vRs)}")
            l2, l3 = lab("e"), lab("ek")
            tg, tu, c = T + 8, T + 9, T + 2
            E.label(l2)
            E("s_waitcnt vmcnt(1)")
            E(f"v_fma_f32 {v(tg)}, -{v(vMean)}, {v(G + 1)}, {v(G)}")
            E(f"v_fma_f32 {v(tu)}, -{v(vMean)}, {v(G + 3)}, {v(G + 2)}")
            E(f"v_max3_u32 {v(c)}, {v(G)}, {v(G + 1)}, {v(G + 2)}")
            E("s_waitcnt vmcnt(0)")
            E(f"v_add_f32 {v(tg)}, {v(tg)}, {v(G + 4)}")
            E(f"v_add_f32 {v(tu)}, {v(tu)}, {v(G + 6)}")
            E(f"v_fma_f32 {v(tg)}, -{v(vMean)}, {v(G + 5)}, {v(tg)}")
            E(f"v_fma_f32 {v(tu)}, -{v(vMean)}, {v(G + 7)}, {v(tu)}")
            E(f"v_max3_u32 {v(c)}, {v(c)}, {v(G + 3)}, {v(G + 4)}")
            E(f"v_max3_u32 {v(c)}, {v(c)}, {v(G + 5)}, {v(G + 6)}")
            E(f"v_permlane32_swap_b32 {v(tg)}, {v(tu)}")
            E(f"v_add_f32 {v(tg)}, {v(tg)}, {v(tu)}")
            E(f"v_mov_b32 {v(tu)}, {v(tg)}")
            E(f"v_max_u32 {v(c)}, {v(c)}, {v(G + 7)}")
            E(f"v_cmp_eq_u32 vcc, -1, {v(c)}")
            E(f"v_permlane16_swap_b32 {v(tg)}, {v(tu)}")
            E(f"s_cbranch_vccz {l3}")
            eloads()
            spin()
            E(f"s_branch {l2}")
            E.label(l3)
            e_, y2 = T + 10, T + 11
            E(f"v_add_f32 {v(tg)}, {v(tg)}, {v(tu)}")
            E(f"v_mul_f32 {v(e_)}, {v(tg)}, {v(nrs)}")
            E(f"v_mul_f32 {v(tg)}, {v(tg)}, {v(vRs)}")
            E(f"v_exp_f32 {v(e_)}, {v(e_)}")
            E(f"v_mov_b32 {v(y2)}, {v(tg)}")
            E(f"v_add_f32 {v(e_)}, 1.0, {v(e_)}")
            E(f"v_rcp_f32 {v(e_)}, {v(e_)}")
            E(f"v_permlane32_swap_b32 {v(tg)}, {v(y2)}")
            E(f"v_mul_f32 {v(e_)}, {v(e_)}, {v(tg)}")
            E(f"v_mul_f32 {v(e_)}, {v(e_)}, {v(y2)}")
            E(f"v_cvt_pk_bf16_f32 {v(e_)}, {v(e_)}, {v(e_)}")
            E(f"ds_write_b16 {v(lHw)}, {v(e_)}")
            stamp(f"E{p}")
            E("s_waitcnt lgkmcnt(0)")
            E("s_barrier")
            for sidx in range(2):
                E(f"ds_read_b128 {v(OP + 4 * sidx, 4)}, {v(lHr)} offset:{64 * sidx}")
            for sidx in range(2):
                E(f"s_waitcnt lgkmcnt({1 - sidx})")
                E(f"{mf} {v(AC, 4)}, {v(OP + 4 * sidx, 4)}, {v(rW2 + 4 * sidx, 4)}, {v(AC, 4) if sidx else 0}")
            E(f"v_and_or_b32 {v(T + 8)}, {v(AC)}, {s(sFFm)}, {v(vTag)}")
            st(1, T + 8, aCst, sCD, 2048, "sc1")
            stamp(f"Dst{p}")

        def gather_rows(imm, init, chk):
            l2, l3 = lab("a"), lab("ak")
            E.label(l2)
            E("s_waitcnt vmcnt(1)")
            E(f"{mf} {v(AC, 4)}, {v(vSel1, 4)}, {v(G, 4)}, {init}")
            E(f"v_max3_u32 {v(chk)}, {v(G)}, {v(G + 1)}, {v(G + 2)}")
            E("s_waitcnt vmcnt(0)")
            E(f"{mf} {v(AC, 4)}, {v(vSel1, 4)}, {v(G + 4, 4)}, {v(AC, 4)}")
            E(f"v_max3_u32 {v(chk)}, {v(chk)}, {v(G + 3)}, {v(G + 4)}")
            E(f"v_max3_u32 {v(chk)}, {v(chk)}, {v(G + 5)}, {v(G + 6)}")
            E(f"v_max_u32 {v(chk)}, {v(chk)}, {v(G + 7)}")
            E(f"v_cmp_eq_u32 vcc, -1, {v(chk)}")
            E(f"s_cbranch_vccz {l3}")
            ld4(G, vL16, sAQ, imm)
            ld4(G + 4, vL16, sAQ, imm + 1024)
            spin()
            E(f"s_branch {l2}")
            E.label(l3)
            E("s_nop 2")

        attention(0)
        oproj(0, None)
        lg0, ljoin = lab("g0"), lab("join")
        E(f"s_cmp_eq_u32 {s(sG)}, {g0}")
        E(f"s_cbranch_scc1 {lg0}")
        k0 = nst[0]
        ffn(0)
        k1 = nst[0]
        E.label(ljoin)
        ld4(G, vL16, sAQ, 2048)
        ld4(G + 4, vL16, sAQ, 3072)
        gather_rows(2048, 0, T + 2)
        for i in range(4):
            E(f"v_mov_b32 {v(vCsq + i)}, {v(AC + i)}")
        xred(2048, "D")
        xshare(256, "D0")
        for sidx in range(2):
            E(f"s_waitcnt lgkmcnt({1 - sidx})")
            for t in range(2):
                E(f"{mf} {v(AC + 4 * t, 4)}, {v(rWQ + (t * 2 + sidx) * 4, 4)}, {v(OP + 4 * sidx, 4)}, {v(AC + 4 * t, 4) if sidx else 0}")
        for i in range(4):
            E(f"v_cvt_pk_bf16_f32 {v(T + 8 + i)}, {v(AC + 2 * i)}, {v(AC + 2 * i + 1)}")
        for i in range(4):
            E(f"v_min_u32 {v(T + 8 + i)}, {s(sNeg2)}, {v(T + 8 + i)}")
        st(4, T + 8, aQ2st, sLR, 0, loc)
        stamp("A2st")
        statpoll(256)
        ld4(G, vL16, sAQ, 0)
        ld4(G + 4, vL16, sAQ, 1024)
        stats_tail(T, T + 1)
        for i in range(4):
            E(f"v_mul_f32 {v(AC + 8 + i)}, -{v(vMean)}, {v(vCsq + i)}".replace("v_mul_f32", "v_mul_f32_e64"))
        E(f"v_mul_f32 {v(vSc)}, {v(vSc)}, {v(vRs)}")
        E(f"s_add_u32 {s(sPR)}, {s(sPR)}, {PR_SIZE}")
        E(f"s_add_u32 {s(sCD)}, {s(sCD)}, {CD_PASS}")
        gather_rows(0, v(AC + 8, 4), T + 2)
        E(f"v_cvt_pk_bf16_f32 {v(T + 8)}, {v(AC)}, {v(AC + 1)}")
        E(f"v_cvt_pk_bf16_f32 {v(T + 9)}, {v(AC + 2)}, {v(AC + 3)}")
        E(f"ds_write_b64 {v(lQw)}, {v(T + 8, 2)}")
        stamp("A2")
        E("s_waitcnt lgkmcnt(0)")
        E("s_barrier")
        attention(1)
        oproj(1, None)
        E(f"s_cmp_eq_u32 {s(sG)}, {g0}")
        E(f"s_cbranch_scc1 L_fin_{tag}")
        ffn(1)
        E(f"s_cmp_lg_u32 {s(sGA)}, {gfin * 4}")
        E(f"s_cbranch_scc1 L_fin_{tag}")
        xred(2048, "D")
        E(f"buffer_store_short {v(T + 1)}, {v(aOut)}, {s(sOUT, 4)}, 0 offen")
        stamp("out")
        E(f"s_cmp_lg_u32 {s(sB)}, 0")
        E(f"s_cbranch_scc1 L_fin_{tag}")
        E(f"v_cmp_eq_u32 vcc, 0, v0")
        E(f"v_mov_b32 {v(T + 2)}, {OOB}")
        E(f"v_mov_b32 {v(T + 3)}, {s(sT[0])}")
        E(f"v_cndmask_b32 {v(T + 2)}, {v(T + 2)}, 0, vcc".replace("v_cndmask_b32", "v_cndmask_b32_e64"))
        E(f"buffer_store_dword {v(T + 3)}, {v(T + 2)}, {s(sWS, 4)}, 0 offen sc1")
        E.label(f"L_fin_{tag}")
        E("s_branch L_fin" if stamps else "s_endpgm")
        E.cut()
        kend = nst[0]
        E.label(lg0)
        E(f"s_add_u32 {s(sTmp)}, {s(sCD)}, {CD_PASS}")
        st(1, vTag, aCst, sCD, 2048, "sc1")
        st(1, vTag, aCst, sTmp, 2048, "sc1")
        xred(0, "C")
        E(f"v_and_b32 {v(vXo)}, {s(sHi)}, {v(T + 1)}")
        nst[0] = k0
        while nst[0] < k1:
            stamp("")
        E(f"s_branch {ljoin}")
        E.cut()
        nst[0] = kend

    body("near", "")
    E.label("L_body_far")
    body("far", "sc1")
    E.label("L_fin")
    if stamps:
        n = nst[0]
        E("s_waitcnt lgkmcnt(0)")
        E(f"v_mov_b32 {v(T)}, 0")
        for k in range(n):
            r = sST + 2 * k if k < 14 else sX + 2 * (k - 14)
            E(f"v_writelane_b32 {v(T)}, {s(r)}, {k}")
        E(f"v_writelane_b32 {v(T)}, {s(sPair)}, 60")
        E(f"v_writelane_b32 {v(T)}, {s(sXcc)}, 61")
        E(f"v_writelane_b32 {v(T)}, {s(sSpin)}, 62")
        E(f"s_memrealtime {s(sPair, 2)}")
        E("s_waitcnt lgkmcnt(0)")
        E(f"v_writelane_b32 {v(T)}, {s(sPair)}, 63")
        E(f"s_lshl_b32 {s(sTmp)}, s2, 10")
        E(f"s_add_u32 {s(sTmp)}, {s(sTmp)}, {WS_DBG}")
        E(f"v_lshlrev_b32 {v(T + 1)}, 2, v0")
        E(f"buffer_store_dword {v(T)}, {v(T + 1)}, {s(sWS, 4)}, {s(sTmp)} offen")
    E.label("L_end")
    E("s_endpgm")

    ref = open(os.path.join(os.path.dirname(os.path.abspath(__file__)), "..", "cdna_kernels", NAME + ".s.ref")).read()
    head = [l for l in ref.splitlines() if l.startswith(";") and "@launch" not in l]
    out = "\n".join(head) + f"\n; @launch grid=(256,1,1) block=(256,1,1) lds={LDS_BYTES}\n"
    out += f""".amdgcn_target "amdgcn-amd-amdhsa--gfx950"
.text
.globl {NAME}_kernel
.p2align 8
.type {NAME}_kernel,@function
{NAME}_kernel:
"""
    out += E.text()
    out += f""".section .rodata,"a"
.p2align 6
.amdhsa_kernel {NAME}_kernel
  .amdhsa_next_free_vgpr 256
  .amdhsa_next_free_sgpr 102
  .amdhsa_accum_offset 256
  .amdhsa_group_segment_fixed_size 0
  .amdhsa_kernarg_size 96
  .amdhsa_user_sgpr_count 2
  .amdhsa_user_sgpr_kernarg_segment_ptr 1
  .amdhsa_system_sgpr_workgroup_id_x 1
.end_amdhsa_kernel
"""
    return out, stamp_names, dict(vgpr=V.n, sgpr=S.n, nops=E.nops)


if __name__ == "__main__":
    import argparse
    ap = argparse.ArgumentParser()
    ap.add_argument("-o", default=os.path.join(os.path.dirname(os.path.abspath(__file__)), "..", "cdna_kernels", NAME + ".s"))
    ap.add_argument("--stamps", action="store_true")
    ap.add_argument("--slow", action="store_true")
    a = ap.parse_args()
    txt, names, info = generate(stamps=a.stamps, force_slow=a.slow)
    open(a.o, "w").write(txt)
    print(info, names)
```
